```python
import torch

def _softmax(x, axis=-1):
    return torch.softmax(x, dim=axis)
def _gelu(x):
    return torch.nn.functional.gelu(x, approximate="tanh")
def _silu(x):
    return torch.nn.functional.silu(x)
def _sigmoid(x):
    return torch.sigmoid(x)
def _layernorm(x, axis=-1, eps=1e-5):
    m = x.mean(dim=axis, keepdim=True)
    v = x.var(dim=axis, keepdim=True, unbiased=False)
    return (x - m) / torch.sqrt(v + eps)
def _scatter_add(tgt, idx, src, axis=0):
    return tgt.clone().index_add_(axis, idx, src)
def _segment_sum(src, seg, n):
    out = torch.zeros((n,) + src.shape[1:], dtype=src.dtype)
    return out.index_add_(0, seg, src)
def _pad(x, pw):
    flat = tuple(v for pair in reversed(pw) for v in pair)
    return torch.nn.functional.pad(x, flat)

kernel_name = 'sequential_preLN__ssm_conv_s4d__glu_gated_bilinear__prompt'

def setup_inputs():

    _w = (lambda a: (lambda t: t.to(torch.bfloat16) if t.is_floating_point() else t)(torch.as_tensor(a)))
    def _A_setup():
        Bsz, L, D, N = 1, 2048, 576, 128
        return {
            "u": _w((lambda *s: torch.randn(*s, dtype=torch.bfloat16) * 0.05)(Bsz, L, D)),
            "log_A_real": _w((lambda *s: torch.randn(*s, dtype=torch.bfloat16) * 6.4)(D, N) * 0.5),
            "A_imag": _w((lambda *s: torch.randn(*s, dtype=torch.bfloat16) * 0.05)(D, N) * 3.14),
            "C_real": _w((lambda *s: torch.randn(*s, dtype=torch.bfloat16) * 0.05)(D, N) / N ** 0.5),
            "C_imag": _w((lambda *s: torch.randn(*s, dtype=torch.bfloat16) * 0.05)(D, N) / N ** 0.5),
            "log_dt": _w((lambda *s: torch.randn(*s, dtype=torch.bfloat16) * 0.05)(D) * 0.5 - 4.0),
            "D_skip": _w((lambda *s: torch.randn(*s, dtype=torch.bfloat16) * 0.05)(D)),
        }
    _A_in = _A_setup()

    def _B_setup():
        B, S, D, F = 1, 2048, 576, 4608
        return {
            "x": _w((lambda *s: torch.randn(*s, dtype=torch.bfloat16) * 0.05)(B, S, D)),
            "w_gate": _w((lambda *s: torch.randn(*s, dtype=torch.bfloat16) * 0.4)(D, F) * (D ** -0.5)),
            "w_up": _w((lambda *s: torch.randn(*s, dtype=torch.bfloat16) * 0.4)(D, F) * (D ** -0.5)),
            "w_down": _w((lambda *s: torch.randn(*s, dtype=torch.bfloat16) * 0.4)(F, D) * (F ** -0.5)),
        }
    _B_in = _B_setup()

    return {
        "A_u": _A_in["u"],
        "A_log_A_real": _A_in["log_A_real"],
        "A_A_imag": _A_in["A_imag"],
        "A_C_real": _A_in["C_real"],
        "A_C_imag": _A_in["C_imag"],
        "A_log_dt": _A_in["log_dt"],
        "A_D_skip": _A_in["D_skip"],
        "B_x": _B_in["x"],
        "B_w_gate": _B_in["w_gate"],
        "B_w_up": _B_in["w_up"],
        "B_w_down": _B_in["w_down"],
    }

def reference(A_u, A_log_A_real, A_A_imag, A_C_real, A_C_imag, A_log_dt, A_D_skip, B_x, B_w_gate, B_w_up, B_w_down):
    def _A_ref(u, log_A_real, A_imag, C_real, C_imag, log_dt, D_skip):
        L = u.shape[1]
        dt = torch.exp(log_dt)
        A = -torch.exp(log_A_real) + 1j * A_imag
        C = (C_real + 1j * C_imag) * dt[:, None]
        pos = (lambda x, dt: x.to(dt))(torch.arange(L), log_dt.dtype)
        P = torch.exp((A * dt[:, None])[:, :, None] * pos[None, None, :])
        K = 2.0 * torch.einsum("dn,dnl->dl", C, P).real
        L2 = 2 * L
        u_t = (lambda x, *d: x.permute(*d))(u, 0, 2, 1)
        Kf = (lambda x, *a, **k: torch.fft.rfft(x.float(), *a, **k))(K, L2)
        Uf = (lambda x, *a, **k: torch.fft.rfft(x.float(), *a, **k))(u_t, L2)
        y = (lambda x, *a, **k: torch.fft.irfft(x, *a, **k).to(torch.bfloat16))(Uf * Kf[None, :, :], L2)[:, :, :L]
        y = (lambda x, *d: x.permute(*d))(y, 0, 2, 1)
        return y + u * D_skip[None, None, :]

    def _B_ref(x, w_gate, w_up, w_down):
        g = torch.einsum("bsd,df->bsf", x, w_gate)
        u = torch.einsum("bsd,df->bsf", x, w_up)
        h = g * u
        return torch.einsum("bsf,fd->bsd", h, w_down)

    x = A_u
    h = x + _A_ref(_layernorm(x, axis=-1), A_log_A_real, A_A_imag, A_C_real, A_C_imag, A_log_dt, A_D_skip)
    h2 = h + _B_ref(_layernorm(h, axis=-1), B_w_gate, B_w_up, B_w_down)
    return h2
```

```python
from asmlib import *
from layout import *
import struct
def fbits(x): return "0x%08x" % struct.unpack("<I", struct.pack("<f", x))[0]
def srd(a, d, p, nbytes):
    a(f"s_mov_b32 s{d}, s{p}\ns_and_b32 s{d+1}, s{p+1}, 0xffff\ns_mov_b32 s{d+2}, {nbytes}\ns_mov_b32 s{d+3}, 0x20000")

def sw_dma_issue(a, sT, sLds, WG, WU, va, sb):
    sK, sStrip, sO, sT2 = sb, sb+1, sb+2, sb+3
    a(f"s_mul_i32 s{sK}, s{sT}, 3641\ns_lshr_b32 s{sK}, s{sK}, 18\ns_mul_i32 s{sT2}, s{sK}, 72\ns_sub_u32 s{sStrip}, s{sT}, s{sT2}")
    a(f"v_lshrrev_b32 v{va+2}, 3, v1\nv_mul_u32_u24 v{va}, 9216, v{va+2}\nv_and_b32 v{va+2}, 2, v{va+2}\nv_and_b32 v{va+1}, 7, v1\nv_xor_b32 v{va+1}, v{va+1}, v{va+2}\nv_lshl_add_u32 v{va}, v{va+1}, 4, v{va}\nv_xor_b32 v{va+1}, 64, v{va}")
    a(f"s_mul_i32 s{sO}, s{sK}, {32*9216}\ns_lshl_b32 s{sT2}, s{sStrip}, 7\ns_add_u32 s{sO}, s{sO}, s{sT2}")
    for q in range(4):
        for mat, W in enumerate((WG, WU)):
            a(f"s_add_u32 m0, s{sLds}, {mat*4096+q*1024}\ns_nop 0\nbuffer_load_dwordx4 v{va+(q&1)}, s[{W}:{W+3}], s{sO} offen {NT} lds")
        if q < 3: a(f"s_add_u32 s{sO}, s{sO}, {8*9216}")
def sw_finish(a, sLds, WS, vb, sb, vmn=0):
    sK, sStrip, sOut, sT2 = sb, sb+1, sb+2, sb+3
    vLd, vT, vWe = vb, vb+1, vb+2
    vR = vb + 4; ONE = vb + 8; F = vb + 12; ACC = F + 32
    a(f"v_lshrrev_b32 v{vT}, 4, v1\nv_lshlrev_b32 v{vR}, 10, v{vT}")
    a(f"v_and_b32 v{vT}, 1, v{vT}\nv_lshlrev_b32 v{vT}, 6, v{vT}")
    a(f"v_bfe_u32 v{vR+1}, v1, 2, 2\nv_lshl_add_u32 v{vR}, v{vR+1}, 7, v{vR}")
    a(f"v_bfe_u32 v{vR+1}, v1, 3, 1\nv_lshl_add_u32 v{vT}, v{vR+1}, 5, v{vT}")
    a(f"v_and_b32 v{vR+1}, 3, v1\nv_lshl_add_u32 v{vR}, v{vR+1}, 3, v{vR}\nv_add_u32 v{vR}, v{vR}, v{vT}\nv_add_u32 v{vR}, s{sLds}, v{vR}")
    for cc in range(1, 4): a(f"v_xor_b32 v{vR+cc}, {cc*32}, v{vR}")
    a(f"s_waitcnt vmcnt({vmn}) lgkmcnt(0)")
    for cc in range(4):
        for mat in range(2):
            f = F + (cc*2+mat)*4
            a(f"ds_read_b64_tr_b16 {vr(f,2)}, v{vR+cc} offset:{mat*4096}\nds_read_b64_tr_b16 {vr(f+2,2)}, v{vR+cc} offset:{mat*4096+512}")
    for i in range(4): a(f"v_mov_b32 v{ONE+i}, 0x3f803f80")
    a(f"v_lshlrev_b32 v{vLd}, 4, v1")
    a(f"s_mul_i32 s{sOut}, s{sStrip}, {4*36864}\ns_lshl_b32 s{sT2}, s{sK}, 11\ns_add_u32 s{sOut}, s{sOut}, s{sT2}\ns_add_u32 s{sOut}, s{sOut}, {WSW}")
    for cc in range(4):
        for mat in range(2):
            f = F + (cc*2+mat)*4
            a(f"s_waitcnt lgkmcnt({14-(cc*2+mat)*2})")
            a(f"buffer_store_dwordx4 {vr(f,4)}, v{vLd}, s[{WS}:{WS+3}], s{sOut} offen offset:{mat*1024} {ST}")
            a(f"v_mfma_f32_16x16x32_bf16 {vr(ACC+(cc*2+mat)*4,4)}, {vr(f,4)}, {vr(ONE,4)}, 0")
        if cc < 3: a(f"s_add_u32 s{sOut}, s{sOut}, 36864")
    a(f"v_and_b32 v{vT}, 15, v1")
    for i in range(1, 8):
        a(f"v_cmp_eq_u32 vcc, {i}, v{vT}")
        for r in range(4): a(f"v_cndmask_b32 v{ACC+r}, v{ACC+r}, v{ACC+4*i+r}, vcc")
    a(f"v_and_b32 v{vWe}, 48, v1\nv_lshl_add_u32 v{vWe}, v{vT}, 6, v{vWe}")
    a(f"s_mul_i32 s{sOut}, s{sK}, {288*128}\ns_lshl_b32 s{sT2}, s{sStrip}, 9\ns_add_u32 s{sOut}, s{sOut}, s{sT2}\ns_add_u32 s{sOut}, s{sOut}, {CSP}")
    a(f"s_mov_b32 exec_lo, 0x00ff00ff\ns_mov_b32 exec_hi, 0x00ff00ff")
    a(f"buffer_store_dwordx4 {vr(ACC,4)}, v{vWe}, s[{WS}:{WS+3}], s{sOut} offen {ST}")
    a("s_mov_b64 exec, -1")
def swh_issue(a, sT, sLds, W, va, sb):
    sK, sStrip, sO, sT2 = sb, sb+1, sb+2, sb+3
    a(f"s_mul_i32 s{sK}, s{sT}, 3641\ns_lshr_b32 s{sK}, s{sK}, 18\ns_mul_i32 s{sT2}, s{sK}, 72\ns_sub_u32 s{sStrip}, s{sT}, s{sT2}")
    a(f"v_lshrrev_b32 v{va+2}, 3, v1\nv_mul_u32_u24 v{va}, 9216, v{va+2}\nv_and_b32 v{va+2}, 2, v{va+2}\nv_and_b32 v{va+1}, 7, v1\nv_xor_b32 v{va+1}, v{va+1}, v{va+2}\nv_lshl_add_u32 v{va}, v{va+1}, 4, v{va}\nv_xor_b32 v{va+1}, 64, v{va}")
    a(f"s_mul_i32 s{sO}, s{sK}, {32*9216}\ns_lshl_b32 s{sT2}, s{sStrip}, 7\ns_add_u32 s{sO}, s{sO}, s{sT2}")
    for q in range(4):
        a(f"s_add_u32 m0, s{sLds}, {q*1024}\ns_add_u32 s{sT2}, s{sO}, {q*8*9216}\nbuffer_load_dwordx4 v{va+(q&1)}, s[{W}:{W+3}], s{sT2} offen {NT} lds")
def swh_prep(a, sLds, sMat, vb, sb):
    sK, sStrip, sOut, sT2 = sb, sb+1, sb+2, sb+3
    vLd, vT, vWe = vb, vb+1, vb+2
    vR = vb + 4; ONE = vb + 8
    a(f"v_lshrrev_b32 v{vT}, 4, v1\nv_lshlrev_b32 v{vR}, 10, v{vT}")
    a(f"v_and_b32 v{vT}, 1, v{vT}\nv_lshlrev_b32 v{vT}, 6, v{vT}")
    a(f"v_bfe_u32 v{vR+1}, v1, 2, 2\nv_lshl_add_u32 v{vR}, v{vR+1}, 7, v{vR}")
    a(f"v_bfe_u32 v{vR+1}, v1, 3, 1\nv_lshl_add_u32 v{vT}, v{vR+1}, 5, v{vT}")
    a(f"v_and_b32 v{vR+1}, 3, v1\nv_lshl_add_u32 v{vR}, v{vR+1}, 3, v{vR}\nv_add_u32 v{vR}, v{vR}, v{vT}\nv_add_u32 v{vR}, s{sLds}, v{vR}")
    for cc in range(1, 4): a(f"v_xor_b32 v{vR+cc}, {cc*32}, v{vR}")
    for i in range(4): a(f"v_mov_b32 v{ONE+i}, 0x3f803f80")
    a(f"v_lshlrev_b32 v{vLd}, 4, v1\nv_and_b32 v{vT}, 15, v1\nv_and_b32 v{vWe}, 48, v1\nv_lshl_add_u32 v{vWe}, v{vT}, 7, v{vWe}")
    a(f"s_mul_i32 s{sOut}, s{sStrip}, {4*36864}\ns_lshl_b32 s{sT2}, s{sK}, 11\ns_add_u32 s{sOut}, s{sOut}, s{sT2}\ns_lshl_b32 s{sT2}, s{sMat}, 10\ns_add_u32 s{sOut}, s{sOut}, s{sT2}\ns_add_u32 s{sOut}, s{sOut}, {WSW}")
    a(f"s_mul_i32 s{sK}, s{sK}, {288*128}\ns_lshl_b32 s{sT2}, s{sStrip}, 9\ns_add_u32 s{sK}, s{sK}, s{sT2}\ns_lshl_b32 s{sT2}, s{sMat}, 6\ns_add_u32 s{sK}, s{sK}, s{sT2}\ns_add_u32 s{sK}, s{sK}, {CSP}")
def swh_finish(a, WS, vb, sb, vmn):
    sK, sOut = sb, sb+2
    vLd, vT, vWe = vb, vb+1, vb+2
    vR = vb + 4; ONE = vb + 8; F = vb + 12; ACC = F + 16
    a(f"s_waitcnt vmcnt({vmn}) lgkmcnt(0)")
    for cc in range(4):
        a(f"ds_read_b64_tr_b16 {vr(F+cc*4,2)}, v{vR+cc}\nds_read_b64_tr_b16 {vr(F+cc*4+2,2)}, v{vR+cc} offset:512")
    for cc in range(4):
        a(f"s_waitcnt lgkmcnt({6-cc*2})")
        a(f"buffer_store_dwordx4 {vr(F+cc*4,4)}, v{vLd}, s[{WS}:{WS+3}], s{sOut} offen {ST}")
        a(f"v_mfma_f32_16x16x32_bf16 {vr(ACC+cc*4,4)}, {vr(F+cc*4,4)}, {vr(ONE,4)}, 0")
        if cc < 3: a(f"s_add_u32 s{sOut}, s{sOut}, 36864")
    for i in range(1, 4):
        a(f"v_cmp_eq_u32 vcc, {i}, v{vT}")
        for r in range(4): a(f"v_cndmask_b32 v{ACC+r}, v{ACC+r}, v{ACC+4*i+r}, vcc")
    a(f"s_mov_b32 exec_lo, 0x000f000f\ns_mov_b32 exec_hi, 0x000f000f")
    a(f"buffer_store_dwordx4 {vr(ACC,4)}, v{vWe}, s[{WS}:{WS+3}], s{sK} offen {ST}")
    a("s_mov_b64 exec, -1")
def swizzle_task(a, sT, sLds, WS, WG, WU, vb=8, sb=40, st=None):
    sw_dma_issue(a, sT, sLds, WG, WU, vb, sb)
    if st: st(1); st(2)
    sw_finish(a, sLds, WS, vb+4, sb)
    if st: st(3); st.flush(v0=4, n=4)

def wd_task(a, sT, sLds, WS, WD, vb=8, sb=40):
    A0 = vb; F = vb + 8
    kp, stp, so, t0, t1, t2 = sb, sb+1, sb+2, sb+3, sb+4, sb+5
    pos = (sb+6, sb+7)
    a(f"s_mul_i32 s{kp}, s{sT}, 1821\ns_lshr_b32 s{kp}, s{kp}, 14\ns_mul_i32 s{stp}, s{kp}, 9\ns_sub_u32 s{stp}, s{sT}, s{stp}\ns_mul_i32 s{so}, s{kp}, {64*1152}\ns_lshl_b32 s{t0}, s{stp}, 7\ns_add_u32 s{so}, s{so}, s{t0}")
    a(f"v_lshrrev_b32 v{A0+1}, 3, v1\nv_mul_u32_u24 v{A0}, 1152, v{A0+1}\nv_and_b32 v{A0+2}, 7, v1\nv_and_b32 v{A0+1}, 6, v{A0+1}\nv_xor_b32 v{A0+2}, v{A0+2}, v{A0+1}\nv_lshl_add_u32 v{A0}, v{A0+2}, 4, v{A0}")
    for q in range(8):
        a(f"s_add_u32 m0, s{sLds}, {q*1024}\ns_add_u32 s{t0}, s{so}, {q*8*1152}\nbuffer_load_dwordx4 v{A0}, s[{WD}:{WD+3}], s{t0} offen {NT} lds")
    a(f"v_lshrrev_b32 v{A0+1}, 2, v1\nv_bfe_u32 v{A0+2}, v1, 3, 2\nv_lshlrev_b32 v{A0+2}, 5, v{A0+2}\nv_lshl_add_u32 v{A0+2}, v{A0+1}, 7, v{A0+2}")
    a(f"v_and_b32 v{A0+1}, 3, v1\nv_lshl_add_u32 v{A0+2}, v{A0+1}, 3, v{A0+2}\nv_add_u32 v{A0+2}, s{sLds}, v{A0+2}\nv_xor_b32 v{A0+3}, 32, v{A0+2}\nv_xor_b32 v{A0+4}, 64, v{A0+2}\nv_xor_b32 v{A0+5}, 96, v{A0+2}\nv_lshlrev_b32 v{A0+6}, 4, v1")
    for kk in range(2):
        a(f"s_lshl_b32 s{t0}, s{kp}, 1\ns_add_u32 s{t0}, s{t0}, {kk}\ns_mul_i32 s{t1}, s{t0}, 57\ns_lshr_b32 s{t1}, s{t1}, 9\ns_mul_i32 s{t2}, s{t1}, 9\ns_sub_u32 s{t0}, s{t0}, s{t2}\ns_lshl_b32 s{t2}, s{t0}, 1")
        a(f"s_cmp_gt_u32 s{t0}, 4\ns_cselect_b32 s{t0}, 9, 0\ns_sub_u32 s{t2}, s{t2}, s{t0}\ns_lshl_b32 s{t2}, s{t2}, 2\ns_and_b32 s{t0}, s{t1}, 3\ns_add_u32 s{t2}, s{t2}, s{t0}\ns_lshr_b32 s{t1}, s{t1}, 2\ns_mul_i32 s{t1}, s{t1}, 36\ns_add_u32 s{t2}, s{t2}, s{t1}\ns_mul_i32 s{pos[kk]}, s{t2}, 9216\ns_add_u32 s{pos[kk]}, s{pos[kk]}, {WDS}")
    a(f"s_lshl_b32 s{stp}, s{stp}, 2")
    a("s_waitcnt vmcnt(0)")
    for cc in range(4):
        for kk in range(2):
            for h in range(2): a(f"ds_read_b64_tr_b16 {vr(F+(cc*2+kk)*4+2*h,2)}, v{A0+2+cc} offset:{kk*4096+h*2048}")
    for cc in range(4):
        a(f"s_add_u32 s{t0}, s{stp}, {cc}\ns_mul_i32 s{t1}, s{t0}, 57\ns_lshr_b32 s{t1}, s{t1}, 9\ns_mul_i32 s{t1}, s{t1}, {144*9216-9216}\ns_lshl_b32 s{t0}, s{t0}, 10\ns_add_u32 s{t0}, s{t0}, s{t1}")
        for kk in range(2):
            a(f"s_add_u32 s{t1}, s{t0}, s{pos[kk]}\ns_waitcnt lgkmcnt({14-(cc*2+kk)*2})\nbuffer_store_dwordx4 {vr(F+(cc*2+kk)*4,4)}, v{A0+6}, s[{WS}:{WS+3}], s{t1} offen {ST}")

WLDS = 17024
def merge(*streams):
    out = []; streams = [list(s) for s in streams]
    while any(streams):
        for s in streams:
            if s: out.append(s.pop(0))
    return out

def ln_issue(a):
    srd(a, 28, 4, 2359296)
    X = 16
    a("s_mul_i32 s41, s2, 9216")
    a("v_lshrrev_b32 v3, 3, v1\nv_and_b32 v4, 7, v1\nv_mul_u32_u24 v5, 1152, v3\nv_lshl_add_u32 v5, v4, 4, v5")
    for i in range(9): a(f"buffer_load_dwordx4 {vr(X+4*i,4)}, v5, s[28:31], s41 offen offset:{i*128} {NT}")
def ln_role(a, WS, st, hook=None):
    X = 16; F = 52
    a("v_mul_u32_u24 v6, 1216, v3\nv_lshl_add_u32 v6, v4, 4, v6\nv_add_u32 v6, s37, v6")
    a("v_bfe_u32 v7, v1, 2, 2\nv_mul_u32_u24 v7, 1216, v7\nv_lshrrev_b32 v8, 4, v1\nv_lshl_add_u32 v7, v8, 5, v7\nv_and_b32 v8, 3, v1\nv_lshl_add_u32 v7, v8, 3, v7\nv_add_u32 v7, s37, v7")
    a("v_lshlrev_b32 v8, 4, v1\nv_mov_b32 v9, 0x3f803f80\nv_mov_b32 v10, 0\nv_mov_b32 v11, 0\ns_mov_b32 s46, 0xffff0000")
    a(f"v_lshlrev_b32 v2, 8, v4\nv_lshl_add_u32 v2, v3, 4, v2\ns_lshr_b32 s43, s2, 1\ns_mul_i32 s43, s43, 18432\ns_and_b32 s44, s2, 1\ns_lshl_b32 s44, s44, 7\ns_add_u32 s43, s43, s44\ns_add_u32 s43, s43, {X8}")
    a("s_setprio 2")
    for i in range(9):
        a(f"s_waitcnt vmcnt({8-i})")
        for j in range(4):
            r = X+4*i+j
            a(f"v_dot2c_f32_bf16 v{10+(j&1)}, v{r}, v9")
            a(f"v_lshlrev_b32 v{F+2*(4*i+j)}, 16, v{r}\nv_and_b32 v{F+2*(4*i+j)+1}, s46, v{r}")
    st(1)
    def red8(r):
        a(f"v_add_f32_dpp v{r}, v{r}, v{r} quad_perm:[1,0,3,2] row_mask:0xf bank_mask:0xf")
        a(f"v_add_f32_dpp v{r}, v{r}, v{r} quad_perm:[2,3,0,1] row_mask:0xf bank_mask:0xf")
        a(f"v_add_f32_dpp v{r}, v{r}, v{r} row_half_mirror row_mask:0xf bank_mask:0xf")
    a("v_add_f32 v10, v10, v11")
    red8(10)
    a(f"v_mul_f32 v10, {fbits(-1.0/576)}, v10\nv_mov_b32 v11, v10")
    a("v_mov_b32 v12, 0\nv_mov_b32 v13, 0\nv_mov_b32 v124, 0\nv_mov_b32 v125, 0")
    for k in range(36):
        t = 14 if k & 1 else 126
        acc = 12 if k & 1 else 124
        a(f"v_pk_add_f32 {vr(t,2)}, {vr(F+2*k,2)}, v[10:11]")
        a(f"v_pk_fma_f32 {vr(acc,2)}, {vr(t,2)}, {vr(t,2)}, {vr(acc,2)}")
        if k % 4 == 3:
            i = k // 4
            a(f"buffer_store_dwordx4 {vr(X+4*i,4)}, v2, s[{WS}:{WS+3}], s43 offen offset:{(i%2)*2048} {ST}")
            if i % 2: a("s_add_u32 s43, s43, 4096")
    a("v_pk_add_f32 v[12:13], v[12:13], v[124:125]\nv_add_f32 v12, v12, v13")
    red8(12)
    a(f"v_mul_f32 v12, {fbits(1.0/576)}, v12")
    a("v_cvt_pk_bf16_f32 v13, v12, v10\nv_and_b32 v10, s46, v13\nv_mov_b32 v11, v10\nv_lshlrev_b32 v12, 16, v13")
    lat = f"v_add_f32 v12, {fbits(1e-5)}, v12\nv_cvt_pk_bf16_f32 v12, v12, v12\nv_lshlrev_b32 v12, 16, v12\nv_sqrt_f32 v12, v12\nv_cvt_pk_bf16_f32 v12, v12, v12\nv_lshlrev_b32 v12, 16, v12\nv_rcp_f32 v12, v12\nv_mul_f32 v12, {fbits(USCALE)}, v12\nv_mov_b32 v13, v12".split("\n")
    sub = [f"v_pk_add_f32 {vr(F+2*k,2)}, {vr(F+2*k,2)}, v[10:11]" for k in range(36)]
    for i, s in enumerate(sub):
        a(s)
        if i % 2 == 1 and lat: a(lat.pop(0))
    for k in range(36): a(f"v_cvt_pk_bf16_f32 v{F+2*k+1}, v{F+2*k}, v{F+2*k+1}")
    for k in range(36): a(f"v_lshlrev_b32 v{F+2*k}, 16, v{F+2*k+1}\nv_and_b32 v{F+2*k+1}, s46, v{F+2*k+1}")
    for k in range(36): a(f"v_pk_mul_f32 {vr(F+2*k,2)}, {vr(F+2*k,2)}, v[12:13]")
    for k in range(36): a(f"v_cvt_pk_bf16_f32 v{F+2*k+1}, v{F+2*k}, v{F+2*k+1}")
    for k in range(36): a(f"v_lshlrev_b32 v{F+2*k}, 16, v{F+2*k+1}\nv_and_b32 v{F+2*k+1}, s46, v{F+2*k+1}")
    for k in range(36):
        a(f"v_cvt_pk_f16_f32 v{F+k}, v{F+2*k}, v{F+2*k+1}")
        if k % 4 == 3: a(f"ds_write_b128 v6, {vr(F+k-3,4)} offset:{(k//4)*128}")
    T = F + 36
    st(2)
    if hook: hook("go")
    for t in range(9):
        a(f"ds_read_b64_tr_b16 {vr(T+4*t,2)}, v7 offset:{t*128}\nds_read_b64_tr_b16 {vr(T+4*t+2,2)}, v7 offset:{t*128+4*1216}")
    a(f"s_add_u32 s43, s41, {U8}\ns_add_u32 s44, s43, 4096\ns_add_u32 s45, s43, 8192")
    for t in range(9):
        a(f"s_waitcnt lgkmcnt({min(15,16-2*t)})")
        a(f"buffer_store_dwordx4 {vr(T+4*t,4)}, v8, s[{WS}:{WS+3}], s{43+t//4} offen offset:{(t%4)*1024} {ST}")
    st(3)
    if hook: hook("pub")
    st.flush(v0=4, n=4)
    if STAMP: a("s_mov_b64 exec, -1")
    a("s_branch k1_kernel_x")

def kg_role(a, WS, st, hook=None):
    srd(a, 28, 6, 147456); srd(a, 32, 8, 147456); srd(a, 40, 10, 147456); srd(a, 44, 12, 147456); srd(a, 52, 14, 1152)
    a("s_lshl_b32 s49, s48, 8\ns_lshl_b32 s51, s48, 1\nv_lshlrev_b32 v3, 2, v1\nv_mov_b32 v4, 0")
    a(f"buffer_load_ushort v5, v4, s[52:55], s51 offen")
    a(f"buffer_load_dword v8, v3, s[28:31], s49 offen {NT}\nbuffer_load_dword v9, v3, s[32:35], s49 offen {NT}")
    a(f"buffer_load_dword v10, v3, s[40:43], s49 offen {NT}\nbuffer_load_dword v11, v3, s[44:47], s49 offen {NT}")
    RS_ = 528; BUF = 8448
    a("s_mov_b32 s56, 0xffff0000\ns_mov_b32 s57, 0x05040100")
    a("v_lshlrev_b32 v6, 3, v1\nv_add_u32 v6, s37, v6")
    a(f"v_and_b32 v2, 15, v1\nv_mul_u32_u24 v7, {RS_}, v2\nv_and_b32 v12, 48, v1\nv_add3_u32 v7, v7, v12, s37")
    TA0, TA1, TA2 = 120, 121, 125
    a(f"v_lshrrev_b32 v12, 4, v1\nv_lshlrev_b32 v13, 4, v2\nv_add_u32 v13, s37, v13")
    a(f"v_lshrrev_b32 v14, 1, v12\nv_lshl_add_u32 v{TA0}, v14, 8, v13\nv_and_b32 v14, 1, v12\nv_lshl_add_u32 v{TA0}, v14, 3, v{TA0}")
    a(f"v_lshl_add_u32 v{TA2}, v12, 10, v13")
    a(f"v_lshl_add_u32 v14, v12, 8, v13\nv_add_u32 v14, 512, v14\nv_lshl_add_u32 v15, v12, 9, v13")
    a(f"v_cmp_gt_u32 vcc, 32, v1\nv_cndmask_b32 v{TA1}, v15, v14, vcc")
    for r, (x, y) in enumerate(((4, 8), (8, 256), (12, 264))):
        a(f"v_mov_b32 v14, {y}\nv_cndmask_b32 v14, v14, {x}, vcc\nv_add_u32 v{TA1+1+r}, v14, v{TA1}".replace(f"v_cndmask_b32 v14, v14, {x}, vcc", f"v_cndmask_b32_e64 v14, v14, {x}, vcc"))
    a(f"v_lshlrev_b32 v126, 4, v1\nv_add_u32 v127, s37, v126")
    LOG2E = 1.4426950408889634
    A_, B_, C_ = 12, 14, 16
    a("s_setprio 1")
    a("s_waitcnt vmcnt(3)")
    a(f"v_lshlrev_b32 v5, 16, v5\nv_lshlrev_b32 v{A_}, 16, v8\nv_and_b32 v{A_+1}, s56, v8")
    a(f"v_mul_f32 v5, {fbits(LOG2E)}, v5\nv_mul_f32 v{A_}, {fbits(LOG2E)}, v{A_}\nv_mul_f32 v{A_+1}, {fbits(LOG2E)}, v{A_+1}")
    a(f"v_exp_f32 v5, v5\nv_exp_f32 v{A_}, v{A_}\nv_exp_f32 v{A_+1}, v{A_+1}")
    a("s_waitcnt vmcnt(0)")
    st(1)
    a(f"v_lshlrev_b32 v{B_}, 16, v9\nv_and_b32 v{B_+1}, s56, v9\nv_lshlrev_b32 v{C_}, 16, v10\nv_and_b32 v{C_+1}, s56, v10\nv_lshlrev_b32 v{C_+2}, 16, v11\nv_and_b32 v{C_+3}, s56, v11")
    a(f"v_cvt_pk_bf16_f32 v5, v5, v5\nv_cvt_pk_bf16_f32 v{A_+1}, v{A_}, v{A_+1}\nv_lshlrev_b32 v4, 16, v5\nv_lshlrev_b32 v5, 16, v5")
    a(f"v_lshlrev_b32 v{A_}, 16, v{A_+1}\nv_and_b32 v{A_+1}, s56, v{A_+1}")
    for r in (C_, C_+2, A_, B_): a(f"v_pk_mul_f32 {vr(r,2)}, {vr(r,2)}, v[4:5]")
    a(f"v_max3_f32 v8, |v{C_}|, |v{C_+1}|, |v{C_+2}|\nv_max_f32_e64 v8, v8, |v{C_+3}|")
    a(f"v_mul_f32 v{A_}, {fbits(-LOG2E)}, v{A_}\nv_mul_f32 v{A_+1}, {fbits(-LOG2E)}, v{A_+1}\nv_mul_f32 v{B_}, 0.15915494, v{B_}\nv_mul_f32 v{B_+1}, 0.15915494, v{B_+1}")
    red = [f"v_max_f32_dpp v8, v8, v8 {m} bank_mask:0xf" for m in ("row_shr:1 row_mask:0xf", "row_shr:2 row_mask:0xf", "row_shr:4 row_mask:0xf", "row_shr:8 row_mask:0xf", "row_bcast:15 row_mask:0xa", "row_bcast:31 row_mask:0xc")]
    red += ["v_readlane_b32 s58, v8, 63", "v_frexp_exp_i32_f32 v8, s58", "v_sub_u32 v9, 7, v8", "v_add_u32 v10, -17, v8"]
    red += [f"v_ldexp_f32 v{C_+i}, v{C_+i}, v9" for i in range(4)] + ["v_ldexp_f32 v10, 1.0, v10"]
    E = {c: 20 + 4*(c-1) for c in range(1, 8)}
    W8 = 48
    G = {k: 52 + 4*(k-1) for k in range(1, 8)}
    GA, GB = 80, 84
    LA, LB = C_, 88
    TM = 92
    anc = []
    for i, (dst, p) in enumerate(((W8, 8.0), (G[1], 128.0), (E[1], 1.0))):
        t = TM + 4*i
        s = []
        if p != 1.0:
            s += [f"v_mul_f32 v{t}, {fbits(p)}, v{A_}", f"v_mul_f32 v{t+1}, {fbits(p)}, v{A_+1}", f"v_mul_f32 v{t+2}, {fbits(p)}, v{B_}", f"v_mul_f32 v{t+3}, {fbits(p)}, v{B_+1}"]
            s += [f"v_exp_f32 v{t}, v{t}", f"v_exp_f32 v{t+1}, v{t+1}", f"v_fract_f32 v{t+2}, v{t+2}", f"v_fract_f32 v{t+3}, v{t+3}"]
        else:
            s += [f"v_exp_f32 v{t}, v{A_}", f"v_exp_f32 v{t+1}, v{A_+1}", f"v_fract_f32 v{t+2}, v{B_}", f"v_fract_f32 v{t+3}, v{B_+1}"]
        s += [f"v_cos_f32 v{dst}, v{t+2}", f"v_cos_f32 v{dst+1}, v{t+3}", f"v_sin_f32 v{dst+2}, v{t+2}", f"v_sin_f32 v{dst+3}, v{t+3}"]
        s += [f"v_pk_mul_f32 {vr(dst,2)}, {vr(dst,2)}, {vr(t,2)}", f"v_pk_mul_f32 {vr(dst+2,2)}, {vr(dst+2,2)}, {vr(t,2)}"]
        anc.append(s)
    for s in merge(anc[0], red, anc[1], anc[2]): a(s)
    a(f"s_lshl_b32 s51, s48, 2\ns_add_u32 s51, s51, {KSC}\nv_mov_b32 v9, 0\ns_mov_b64 exec, 1\nbuffer_store_dword v10, v9, s[{WS}:{WS+3}], s51 offen {ST}\ns_mov_b64 exec, -1")
    def cmul(d, x, y, t):
        return [f"v_pk_mul_f32 {vr(t,2)}, {vr(x+2,2)}, {vr(y+2,2)}", f"v_pk_mul_f32 {vr(t+2,2)}, {vr(x+2,2)}, {vr(y,2)}",
                f"v_pk_fma_f32 {vr(d,2)}, {vr(x,2)}, {vr(y,2)}, {vr(t,2)} neg_lo:[0,0,1] neg_hi:[0,0,1]", f"v_pk_fma_f32 {vr(d+2,2)}, {vr(x,2)}, {vr(y+2,2)}, {vr(t+2,2)}"]
    def emit(x, buf, row, t, neg=False):
        n = "-" if neg else ""
        return [f"v_cvt_pk_f16_f32 v{t}, v{x}, v{x+1}", f"v_cvt_pk_f16_f32 v{t+1}, {n}v{x+2}, {n}v{x+3}", f"ds_write_b64 v6, {vr(t,2)} offset:{buf*BUF + row*RS_}"]
    s1 = []; cur, oth = LA, LB
    for i in range(16):
        s1 += emit(cur, 0, i, TM+4+2*(i & 1), neg=True)
        if i < 15: s1 += cmul(oth, cur, W8, TM); cur, oth = oth, cur
    s2 = [f"v_mov_b32 v{TM+12}, 0x3c003c00", f"v_mov_b32 v{TM+13}, 0", f"ds_write_b64 v6, {vr(TM+12,2)} offset:{BUF}"]
    s2 += emit(G[1], 1, 8, TM+14)
    for c in range(1, 8):
        if c > 1: s2 += cmul(E[c], E[c-1], E[1], TM+8)
        s2 += emit(E[c], 1, c, TM+12)
        s2 += cmul(GA, G[1], E[c], TM+8) + emit(GA, 1, 8+c, TM+14)
    s3 = []
    for k in range(2, 8): s3 += cmul(G[k], G[k-1], G[1], TM+16)
    for s in merge(s1, s2, s3): a(s)
    BF, AF = 128, 160
    for ks in range(8): a(f"ds_read_b128 {vr(BF+4*ks,4)}, v7 offset:{ks*64}")
    for ks in range(8): a(f"ds_read_b128 {vr(AF+4*ks,4)}, v7 offset:{BUF+ks*64}")
    s1 = []
    rows1 = [(2,0),(2,2),(2,4),(2,6),(3,0),(3,2),(3,4),(3,6),(4,0),(4,4),(5,0),(5,4),(6,0),(6,4),(7,0),(7,4)]
    for i, (k, c) in enumerate(rows1):
        if c == 0: s1 += emit(G[k], 0, i, TM+4+2*(i & 1))
        else:
            d = LA if i & 1 else LB
            s1 += cmul(d, G[k], E[c], TM) + emit(d, 0, i, TM+4+2*(i & 1))
    s2 = []; cur = G[7]; nx = [GA, GB]
    for i in range(9):
        d = nx[i & 1]; s2 += cmul(d, cur, G[1], TM+8) + emit(d, 1, i, TM+12+2*(i & 1)); cur = d
    D0, D1, D2 = 192, 196, 200
    mf = ["s_waitcnt lgkmcnt(4)"] + [f"v_mfma_f32_16x16x32_f16 {vr(D0,4)}, {vr(AF+4*ks,4)}, {vr(BF+4*ks,4)}, {'0' if ks==0 else vr(D0,4)}" for ks in range(8)]
    body = merge(s1, s2)
    nw = 0; placed = False
    for i, s in enumerate(body):
        a(s)
        if s.startswith("ds_write"): nw += 1
        if nw >= 4 and mf and (i % 3 == 0 or nw == 4):
            if nw == 4 and not placed: a(mf.pop(0)); placed = True
            elif placed: a(mf.pop(0))
    for s in mf: a(s)
    A2 = 20
    for ks in range(8): a(f"ds_read_b128 {vr(AF+4*ks,4)}, v7 offset:{ks*64}")
    for ks in range(8): a(f"ds_read_b128 {vr(A2+4*ks,4)}, v7 offset:{BUF+ks*64}")
    st(2)
    if hook: hook("go")
    for ks in range(8):
        a(f"s_waitcnt lgkmcnt({15-ks})\nv_mfma_f32_16x16x32_f16 {vr(D1,4)}, {vr(AF+4*ks,4)}, {vr(BF+4*ks,4)}, {'0' if ks==0 else vr(D1,4)}")
    for ks in range(8):
        a(f"s_waitcnt lgkmcnt({7-ks})\nv_mfma_f32_16x16x32_f16 {vr(D2,4)}, {vr(A2+4*ks,4)}, {vr(BF+4*ks,4)}, {'0' if ks==0 else vr(D2,4)}")
    for D in (D0, D1, D2):
        a(f"v_cvt_pk_f16_f32 v{D}, v{D}, v{D+1}\nv_cvt_pk_f16_f32 v{D+1}, v{D+2}, v{D+3}")
        if D == D0: a(f"ds_write_b64 v{TA0}, {vr(D,2)}")
        elif D == D1: a(f"ds_write_b16 v{TA1}, v{D}\nds_write_b16_d16_hi v{TA1+1}, v{D}\nds_write_b16 v{TA1+2}, v{D+1}\nds_write_b16_d16_hi v{TA1+3}, v{D+1}")
        else: a(f"ds_write_b16 v{TA2}, v{D} offset:2048\nds_write_b16_d16_hi v{TA2}, v{D} offset:2304\nds_write_b16 v{TA2}, v{D+1} offset:2560\nds_write_b16_d16_hi v{TA2}, v{D+1} offset:2816")
    a("ds_read_b128 v[8:11], v127\nds_read_u16 v12, v127 offset:16")
    a("ds_read_u16 v13, v127 offset:1024\nds_read_u16 v14, v127 offset:1032\nds_read_u16 v15, v127 offset:1040")
    a("ds_read_u16 v16, v127 offset:2048\nds_read_u16 v17, v127 offset:2064\nds_read_u16 v18, v127 offset:3072\nds_read_u16 v19, v127 offset:3088")
    a(f"s_lshl_b32 s51, s48, 12\ns_add_u32 s51, s51, {KT}\ns_mov_b32 s60, 0xaaaaaaaa\ns_mov_b32 s61, 0xaaaaaaaa")
    a("s_waitcnt lgkmcnt(7)")
    a("v_perm_b32 v20, v8, v8, s57\nv_perm_b32 v21, v10, v9, s57\nv_perm_b32 v22, v10, v10, s57\nv_perm_b32 v23, v12, v11, s57")
    for r in range(4): a(f"v_cndmask_b32 v{20+r}, v{20+r}, v{8+r}, vcc")
    a(f"buffer_store_dwordx4 v[20:23], v126, s[{WS}:{WS+3}], s51 offen {ST}")
    a("s_waitcnt lgkmcnt(4)")
    a("v_perm_b32 v24, v13, v13, s57\nv_perm_b32 v25, v14, v13, s57\nv_perm_b32 v26, v14, v14, s57\nv_perm_b32 v27, v15, v15, s57")
    a(f"buffer_store_dwordx4 v[24:27], v126, s[{WS}:{WS+3}], s51 offen offset:1024 {ST}")
    for j in range(2):
        lo, hi, d = 16+2*j, 17+2*j, 28+4*j
        a(f"s_waitcnt lgkmcnt({2-2*j})")
        a(f"v_perm_b32 v{d}, v{lo}, v{lo}, s57\nv_cndmask_b32_e64 v{d+2}, v{lo}, v{hi}, s[60:61]\nv_perm_b32 v{d+3}, v{hi}, v{hi}, s57\nv_mov_b32 v{d+1}, v{d}\nv_perm_b32 v{d+2}, v{hi}, v{d+2}, s57")
        a(f"buffer_store_dwordx4 {vr(d,4)}, v126, s[{WS}:{WS+3}], s51 offen offset:{2048+1024*j} {ST}")
    st(3)
    if hook: hook("pub")
    st.flush(v0=4, n=4)
    if STAMP: a("s_mov_b64 exec, -1")
    a("s_branch k1_kernel_x")

def gen_k1(name, nsw):
    a = Asm()
    nwg = 256 + max(0, (nsw - 192 + 3)//4)
    st = Stamper(a, 0, 70, 24)
    a(f"s_cmp_ge_u32 s2, {nwg}\ns_cbranch_scc1 {name}_end")
    st(0)
    a("s_load_dwordx4 s[4:7], s[0:1], 0\ns_load_dwordx4 s[8:11], s[0:1], 16\ns_load_dwordx4 s[12:15], s[0:1], 32\ns_load_dwordx4 s[16:19], s[0:1], 64\ns_load_dwordx2 s[20:21], s[0:1], 104\ns_load_dwordx2 s[22:23], s[0:1], 80")
    a("v_and_b32 v1, 63, v0\nv_lshrrev_b32 v2, 6, v0\ns_nop 0\nv_readfirstlane_b32 s3, v2")
    a(f"s_mul_i32 s37, s3, {WLDS}")
    a("s_lshl_b32 s48, s3, 8\ns_add_u32 s48, s48, s2\ns_sub_u32 s48, s48, 256")
    a("s_waitcnt lgkmcnt(0)")
    WS = 24
    srd(a, WS, 20, WS_BYTES)
    if nwg > 256: a(f"s_lshl_b32 s36, s2, 2\ns_add_u32 s36, s36, s3\ns_sub_u32 s36, s36, {1024-192}\ns_cmp_ge_u32 s2, 256\ns_cbranch_scc1 {name}_sw")
    a(f"s_cmp_lg_u32 s3, 0\ns_cbranch_scc1 {name}_nl")
    ln_issue(a)
    a(f"s_branch {name}_ln")
    a.label(f"{name}_nl")
    a(f"s_sub_u32 s36, s2, 64\ns_cmp_ge_u32 s48, 576\ns_cbranch_scc1 {name}_sw")
    kg_role(a, WS, st)
    a.label(f"{name}_ln")
    ln_role(a, WS, st)
    a.label(f"{name}_sw")
    a("s_lshr_b32 s38, s36, 3")
    code_prefetch(a, "k1_kernel", "L_text_end", 38, 100, 60, 10)
    if int(os.environ.get('TLBT', 0)) > 1:
        a(f"v_min_u32 v104, 35, v1\nv_lshlrev_b32 v104, 21, v104\nbuffer_load_dword v105, v104, s[{WS}:{WS+3}], 0 offen")
    a(f"s_cmp_ge_u32 s36, 16\ns_cbranch_scc1 {name}_nz\nv_lshlrev_b32 v100, 7, v1\nv_mov_b32 v101, 0\ns_lshl_b32 s38, s36, 13\ns_add_u32 s38, s38, {CNT}\nbuffer_store_dword v101, v100, s[{WS}:{WS+3}], s38 offen {ST}")
    a.label(f"{name}_nz")
    srd(a, 28, 16, 5308416); srd(a, 32, 18, 5308416)
    a(f"s_cmp_ge_u32 s36, {nsw}\ns_cbranch_scc1 {name}_end")
    swizzle_task(a, 36, 37, WS, 28, 32, st=st)
    a.label(f"{name}_x")
    a.label(f"{name}_end")
    a("s_endpgm")
    return a.text(), nwg, 4*WLDS

def gen_k0(name):
    a = Asm()
    a(f"s_cmp_ge_u32 s2, 324\ns_cbranch_scc1 {name}_end")
    a("s_load_dwordx4 s[16:19], s[0:1], 64\ns_load_dwordx2 s[20:21], s[0:1], 104")
    a("v_and_b32 v1, 63, v0\nv_lshrrev_b32 v2, 6, v0\ns_nop 0\nv_readfirstlane_b32 s3, v2")
    a("s_lshl_b32 s37, s3, 13\ns_lshl_b32 s36, s2, 2\ns_add_u32 s36, s36, s3\ns_waitcnt lgkmcnt(0)")
    srd(a, 24, 20, WS_BYTES); srd(a, 28, 16, 5308416); srd(a, 32, 18, 5308416)
    swizzle_task(a, 36, 37, 24, 28, 32)
    a.label(f"{name}_end")
    a("s_endpgm")
    return a.text(), 324, 32768
```

```python
U8  = 0x000000
X8  = 0x280000
KT  = 0x500000
HF  = 0x780000
P1  = 0xA00000
P2  = 0xB00000
CSP = 0xC00000
RS2 = 0xD00000
WSW = 0x1000000
HH  = 0x2000000
WS_BYTES = 0x10000000
ST = "sc1"
import os
HLS = 147456 + int(os.environ.get('HPAD', 0))
KSC = 0xD10000
NT = os.environ.get('NT', 'nt')
USCALE = 2048.0
PST = 16384 + 128
PP = 0x3400000
PPS = 64*36*1024
WDS = 0x4000000
CNT = 0xD20000
FLG = 0xD40000
```

```python
from asmlib import *
from k1 import srd
def gen(name, instr, n=1024, passes=3):
    a = Asm()
    a(f"s_cmp_ge_u32 s2, 256\ns_cbranch_scc1 {name}_end")
    a("s_load_dwordx2 s[6:7], s[0:1], 96\ns_waitcnt lgkmcnt(0)")
    srd(a, 12, 6, 256)
    for r in range(2, 40): a(f"v_mov_b32 v{r}, 1.0")
    a("s_mov_b32 s30, 0\nv_mov_b32 v41, 0\nv_lshlrev_b32 v42, 3, v0\nv_lshlrev_b32 v43, 4, v0")
    a.label(name + "_l")
    a("s_memtime s[40:41]\ns_waitcnt lgkmcnt(0)")
    for i in range(n): a(instr(i))
    a("s_memtime s[42:43]\ns_waitcnt lgkmcnt(0)\ns_sub_u32 s44, s42, s40")
    a(f"s_cmp_lg_u32 s2, 37\ns_cbranch_scc1 {name}_s")
    a("v_mov_b32 v40, s44\nbuffer_store_dword v40, v41, s[12:15], 0 offen")
    a.label(name + "_s")
    a(f"v_add_u32 v41, 4, v41\ns_add_u32 s30, s30, 1\ns_cmp_lt_u32 s30, {passes}\ns_cbranch_scc1 {name}_l")
    a.label(name + "_end")
    a("s_endpgm")
    return a.text()
def pkd(d): return lambda i: f"v_pk_mul_f32 v[{2+2*(i%d)}:{3+2*(i%d)}], v[{2+2*(i%d)}:{3+2*(i%d)}], v[22:23]"
def md(d): return lambda i: f"v_mul_f32 v{2+(i%d)}, v{2+(i%d)}, v22"
def mix(i):
    k = i % 4
    return ["v_pk_mul_f32 v[2:3], v[20:21], v[22:23]", "v_cvt_pk_f16_f32 v4, v2, v3", "v_cvt_pk_f16_f32 v5, v2, v3", "ds_write_b64 v41, v[4:5]"][k]
def mix2(i):
    k = i % 8
    return "ds_write_b64 v41, v[4:5]" if k == 7 else f"v_pk_mul_f32 v[{6+2*k}:{7+2*k}], v[20:21], v[22:23]"
def mk(op, per):
    return lambda i: op if i % per == per - 1 else f"v_pk_mul_f32 v[{6+2*(i%6)}:{7+2*(i%6)}], v[20:21], v[22:23]"
V = {"a_kernel": mk("ds_write_b64 v42, v[4:5]", 8), "b_kernel": mk("ds_write_b128 v43, v[24:27]", 8), "c_kernel": mk("ds_write_b64 v42, v[4:5]", 4), "d_kernel": mk("ds_read_b128 v[28:31], v43", 8),
     "e_kernel": mk("ds_read_b128 v[28:31], v43", 1), "f_kernel": mk("ds_read_b64_tr_b16 v[28:29], v42", 1), "g_kernel": mk("v_cvt_pk_f16_f32 v30, v6, -v7", 2), "h_kernel": mk("v_pk_fma_f32 v[30:31], v[6:7], v[8:9], v[10:11] neg_lo:[0,0,1] neg_hi:[0,0,1]", 1)}
ks = [(n, gen(n, f), 64, 64, 64) for n, f in V.items()]
ls = [(n, 256, 256, 8192) for n in V]
build_file(ks, ls, "bj.s")
assemble("bj.s", "bj.co", "bj.spec")
```
